```python
import torch

def _softmax(x, axis=-1):
    return torch.softmax(x, dim=axis)

def _gelu(x):
    return torch.nn.functional.gelu(x, approximate='tanh')

def _silu(x):
    return torch.nn.functional.silu(x)

def _sigmoid(x):
    return torch.sigmoid(x)

def _layernorm(x, axis=-1, eps=1e-05):
    m = x.mean(dim=axis, keepdim=True)
    v = x.var(dim=axis, keepdim=True, unbiased=False)
    return (x - m) / torch.sqrt(v + eps)

def _scatter_add(tgt, idx, src, axis=0):
    return tgt.clone().index_add_(axis, idx, src)

def _segment_sum(src, seg, n):
    out = torch.zeros((n,) + src.shape[1:], dtype=src.dtype)
    return out.index_add_(0, seg, src)

def _pad(x, pw):
    flat = tuple((v for pair in reversed(pw) for v in pair))
    return torch.nn.functional.pad(x, flat)
kernel_name = 'adaLN_cond__sliding_block_cached__swiglu_ffn__decode'

def setup_inputs():

    _w = lambda a: (lambda t: t.to(torch.bfloat16) if t.is_floating_point() else t)(torch.as_tensor(a))

    def _A_setup():
        B, Sq, D = (1, 1, 1024)
        Hq, Hkv, Sk, Dh = (32, 4, 65536, 128)
        assert Hq % Hkv == 0, (Hq, Hkv)
        return {'x': _w((lambda *s: torch.randn(*s, dtype=torch.bfloat16) * 0.1)(B, Sq, D)), 'k_cache': _w((lambda *s: torch.randn(*s, dtype=torch.bfloat16) * 0.8)(B, Hkv, Sk, Dh)), 'v_cache': _w((lambda *s: torch.randn(*s, dtype=torch.bfloat16) * 0.8)(B, Hkv, Sk, Dh)), 'wq': _w((lambda *s: torch.randn(*s, dtype=torch.bfloat16) * 0.8)(D, Hq * Dh) * D ** (-0.5)), 'wo': _w((lambda *s: torch.randn(*s, dtype=torch.bfloat16) * 0.8)(Hq * Dh, D) * (Hq * Dh) ** (-0.5))}
    _A_in = _A_setup()

    def _B_setup():
        B, S, D, F = (1, 1, 1024, 3584)
        return {'x': _w((lambda *s: torch.randn(*s, dtype=torch.bfloat16) * 0.1)(B, S, D)), 'w_gate': _w((lambda *s: torch.randn(*s, dtype=torch.bfloat16) * 0.1)(D, F)), 'w_up': _w((lambda *s: torch.randn(*s, dtype=torch.bfloat16) * 0.1)(D, F)), 'w_down': _w((lambda *s: torch.randn(*s, dtype=torch.bfloat16) * 0.1)(F, D))}
    _B_in = _B_setup()
    return {'A_x': _A_in['x'], 'A_k_cache': _A_in['k_cache'], 'A_v_cache': _A_in['v_cache'], 'A_wq': _A_in['wq'], 'A_wo': _A_in['wo'], 'B_x': _B_in['x'], 'B_w_gate': _B_in['w_gate'], 'B_w_up': _B_in['w_up'], 'B_w_down': _B_in['w_down'], 'c': _w((lambda *s: torch.randn(*s, dtype=torch.bfloat16) * 0.2)(1, 1024) * 8.0), 'w_mod': _w((lambda *s: torch.randn(*s, dtype=torch.bfloat16) * 0.2)(1024, 6 * 1024) * 1024 ** (-0.5) * 8.0)}

def reference(A_x, A_k_cache, A_v_cache, A_wq, A_wo, B_x, B_w_gate, B_w_up, B_w_down, c, w_mod):

    def _A_ref(x, k_cache, v_cache, wq, wo):
        B, Sq, D = x.shape
        Hq, Dh = (32, 128)
        Hkv, Sk = (k_cache.shape[1], k_cache.shape[2])
        W = min(4096, max(256, Sk // 4))
        rep = Hq // Hkv
        q = (lambda x, *d: x.permute(*d))((x @ wq).reshape(B, Sq, Hq, Dh), 0, 2, 1, 3)
        k = (lambda x, n, axis: torch.repeat_interleave(x, n, dim=axis))(k_cache[:, :, Sk - W:, :], rep, axis=1)
        v = (lambda x, n, axis: torch.repeat_interleave(x, n, dim=axis))(v_cache[:, :, Sk - W:, :], rep, axis=1)
        scores = torch.einsum('bhqd,bhkd->bhqk', q, k) * Dh ** (-0.5)
        p = _softmax(scores, axis=-1)
        o = torch.einsum('bhqk,bhkd->bhqd', p, v)
        return (lambda x, *d: x.permute(*d))(o, 0, 2, 1, 3).reshape(B, Sq, Hq * Dh) @ wo

    def _B_ref(x, w_gate, w_up, w_down):
        g = _silu(x @ w_gate)
        u = x @ w_up
        return g * u @ w_down
    x = A_x
    mod = (_silu(c) @ w_mod).reshape(c.shape[0], 6, 1, -1)
    sa, ca, ga, sb, cb, gb = (mod[:, 0].clone(), mod[:, 1].clone(), mod[:, 2].clone(), mod[:, 3].clone(), mod[:, 4].clone(), mod[:, 5].clone())
    h = _layernorm(x, axis=-1) * (1 + ca) + sa
    x = x + ga * _A_ref(h, A_k_cache, A_v_cache, A_wq, A_wo)
    h = _layernorm(x, axis=-1) * (1 + cb) + sb
    x = x + gb * _B_ref(h, B_w_gate, B_w_up, B_w_down)
    return x
```

```python
import re

TRANS = ("v_exp_f32", "v_log_f32", "v_rcp_f32", "v_rsq_f32", "v_sqrt_f32", "v_sin_f32", "v_cos_f32")

_reg_re = re.compile(r"^(-|\|)?(v|s|a)(\d+)\|?$")
_rng_re = re.compile(r"^(v|s|a)\[(\d+):(\d+)\]$")


def regs_of(tok):
    tok = tok.strip()
    if tok.startswith("-"):
        tok = tok[1:]
    if tok.startswith("abs(") and tok.endswith(")"):
        tok = tok[4:-1]
    if tok.startswith("|") and tok.endswith("|"):
        tok = tok[1:-1]
    m = _rng_re.match(tok)
    if m:
        return [m.group(1) + str(i) for i in range(int(m.group(2)), int(m.group(3)) + 1)]
    m = re.match(r"^(v|s|a)(\d+)$", tok)
    if m:
        return [m.group(1) + m.group(2)]
    if tok == "vcc":
        return ["vcc"]
    if tok in ("vcc_lo", "vcc_hi"):
        return ["vcc"]
    if tok == "exec":
        return ["exec"]
    if tok == "m0":
        return ["m0"]
    return []


def split_ops(s):
    out, depth, cur = [], 0, ""
    for ch in s:
        if ch in "[(":
            depth += 1
        if ch in "])":
            depth -= 1
        if ch == "," and depth == 0:
            out.append(cur.strip())
            cur = ""
        else:
            cur += ch
    if cur.strip():
        out.append(cur.strip())
    return out


class Ins:
    def __init__(self, text):
        self.text = text
        t = text.split(";")[0].strip()
        parts = t.split(None, 1)
        self.op = parts[0]
        rest = parts[1] if len(parts) > 1 else ""
        ops = split_ops(rest)
        mods = ""
        if ops:
            lp = ops[-1].split(None, 1)
            ops[-1] = lp[0]
            mods = lp[1] if len(lp) > 1 else ""
        self.ops = ops
        self.mods = mods
        op = self.op
        self.is_mfma = op.startswith("v_mfma")
        self.is_valu = op.startswith("v_") and not self.is_mfma
        self.is_trans = any(op.startswith(x) for x in TRANS)
        self.is_salu = op.startswith("s_") and not op.startswith(("s_load", "s_waitcnt", "s_nop", "s_barrier", "s_branch", "s_cbranch", "s_sleep", "s_endpgm", "s_setprio", "s_memtime", "s_memrealtime", "s_buffer_load", "s_atomic"))
        self.is_vmem = op.startswith(("buffer_", "global_", "flat_"))
        self.is_ds = op.startswith("ds_")
        self.is_dpp = "_dpp" in op or "row_" in mods or "quad_perm" in mods
        self.is_perml = op.startswith("v_permlane")
        self.is_readlane = op.startswith(("v_readlane", "v_readfirstlane"))
        self.is_ldsdma = self.is_vmem and (" lds" in (" " + mods) or "load_lds" in op)
        self.dst, self.src = [], []
        R = [regs_of(o) for o in ops]
        if self.is_mfma:
            self.dst = R[0]
            self.srcA, self.srcB, self.srcC = R[1], R[2], R[3]
            self.src = R[1] + R[2] + R[3]
            self.passes = 4 if "16x16" in op else (8 if "32x32" in op else 2)
            if "16x16x4_f32" in op:
                self.passes = 8
        elif self.is_valu:
            if self.is_perml:
                self.dst = R[0] + R[1]
                self.src = R[0] + R[1]
            elif op.startswith("v_cmp"):
                self.dst = R[0]
                self.src = sum(R[1:], [])
                if op.startswith("v_cmpx"):
                    self.dst = self.dst + ["exec"]
            elif op.startswith(("v_add_co", "v_sub_co", "v_addc_co", "v_subb_co", "v_subrev_co")):
                self.dst = R[0] + R[1]
                self.src = sum(R[2:], [])
            else:
                self.dst = R[0]
                self.src = sum(R[1:], [])
                if op.startswith(("v_fmac", "v_dot2c", "v_pk_fmac")) or self.is_dpp:
                    self.src = self.src + R[0]
        elif self.is_salu:
            if op.startswith(("s_cmp", "s_bitcmp")):
                self.src = sum(R, [])
            else:
                self.dst = R[0] if R else []
                self.src = sum(R[1:], [])
                if "saveexec" in op:
                    self.dst = self.dst + ["exec"]
        elif self.is_vmem:
            if self.is_ldsdma:
                self.src = sum(R, []) + ["m0"]
            elif "_load" in op:
                self.dst = R[0]
                self.src = sum(R[1:], [])
            else:
                self.src = sum(R, [])
                if op.startswith("buffer_store"):
                    self.data = R[0]
                elif op.startswith("global_store"):
                    self.data = R[1]
        elif self.is_ds:
            if op.startswith(("ds_read", "ds_bpermute", "ds_permute", "ds_swizzle")) or "_rtn" in op:
                self.dst = R[0]
                self.src = sum(R[1:], [])
            else:
                self.src = sum(R, [])
        elif op.startswith(("s_load", "s_memtime", "s_memrealtime")):
            self.dst = R[0]
            self.src = sum(R[1:], [])
        self.states = 1
        if op == "s_nop":
            self.states = int(ops[0], 0) + 1


class Emitter:
    def __init__(self):
        self.lines = []
        self.hist = []
        self.nlabel = 0

    def raw(self, text):
        self.lines.append(text)

    def label(self, name):
        self.lines.append(name + ":")

    def newlabel(self, base="L"):
        self.nlabel += 1
        return "%s_%d" % (base, self.nlabel)

    def comment(self, c):
        self.lines.append("    ; " + c)

    def _need(self, ins):
        need = 0
        dist = 0
        for p in reversed(self.hist):
            req = 0
            pd = set(p.dst)
            if p.is_valu:
                vd = {r for r in pd if r[0] in "va" and r != "vcc"}
                sd = {r for r in pd if r[0] == "s" or r == "vcc"}
                if ins.is_mfma and vd & set(ins.src):
                    req = max(req, 2)
                if ins.is_perml and vd & set(ins.src):
                    req = max(req, 2)
                if ins.is_dpp and ins.is_valu and vd & set(ins.src):
                    req = max(req, 2)
                if ins.is_readlane and vd & set(ins.src):
                    req = max(req, 1)
                if p.is_trans and ins.is_valu and not ins.is_trans and vd & set(ins.src):
                    req = max(req, 1)
                if p.is_trans and (ins.is_vmem or ins.is_ds or ins.is_mfma) and vd & set(ins.src):
                    req = max(req, 2)
                if sd:
                    if ins.is_valu and sd & set(ins.src):
                        req = max(req, 4 if ins.op.startswith(("v_readlane", "v_writelane")) else 2)
                    if ins.is_valu and ins.op.startswith("v_cndmask") and "vcc" in sd and len(ins.ops) == 3:
                        req = max(req, 2)
                    if ins.is_vmem and sd & set(ins.src):
                        req = max(req, 5)
                    if ins.is_salu and sd & set(ins.src):
                        req = max(req, 1)
                if "exec" in pd:
                    if ins.is_dpp:
                        req = max(req, 5)
                    if ins.is_mfma or ins.is_perml or ins.is_readlane:
                        req = max(req, 4)
            if p.is_mfma:
                tbl_rw = {2: 5, 4: 8, 8: 12, 16: 20}[p.passes]
                tbl_ov = {2: 4, 4: 6, 8: 10, 16: 18}[p.passes]
                if ins.is_mfma:
                    if pd & (set(ins.srcA) | set(ins.srcB)):
                        req = max(req, tbl_rw)
                    if pd & set(ins.srcC):
                        if list(p.dst) == list(ins.srcC) and p.passes == ins.passes:
                            req = max(req, 2 if p.passes == 2 else 0)
                        else:
                            req = max(req, tbl_ov)
                    elif pd & set(ins.dst):
                        req = max(req, tbl_ov)
                elif ins.is_valu or ins.is_vmem or ins.is_ds:
                    if pd & (set(ins.src) | set(ins.dst)):
                        req = max(req, tbl_rw)
                if ins.is_valu and set(p.srcC) & set(ins.dst):
                    req = max(req, {2: 1, 4: 3, 8: 7, 16: 15}[p.passes])
            if p.is_salu and "m0" in pd and ins.is_ldsdma:
                req = max(req, 1)
            if p.is_vmem and hasattr(p, "data") and len(p.data) >= 3:
                if set(p.data) & set(ins.dst):
                    req = max(req, 2 if ins.is_valu else 1)
            if req > dist:
                need = max(need, req - dist)
            dist += p.states
            if dist > 24:
                break
        return need

    def __call__(self, text):
        for t in text.strip().split("\n"):
            t = t.strip()
            if not t:
                continue
            if t.startswith(";"):
                self.lines.append("    " + t)
                continue
            if t.endswith(":"):
                self.lines.append(t)
                continue
            ins = Ins(t)
            n = self._need(ins)
            while n > 0:
                k = min(n, 16)
                nop = Ins("s_nop %d" % (k - 1))
                self.lines.append("    s_nop %d" % (k - 1))
                self.hist.append(nop)
                n -= k
            self.lines.append("    " + t)
            self.hist.append(ins)
            if len(self.hist) > 64:
                self.hist = self.hist[-40:]

    def text(self):
        return "\n".join(self.lines) + "\n"
```

```python
import sys, struct
from emit import Emitter

NAME = "adaLN_cond__sliding_block_cached__swiglu_ffn__decode"


def f2u(x):
    return struct.unpack("<I", struct.pack("<f", x))[0]


class Cfg:
    stamps = False
    spin_limit = 200000
    l_tries = 400
    pretouch = True
    nt = True


WS_Q = 0x001000
WS_O = 0x030000
WS_S = 0x0B0000
WS_XR = 0x0B8000
WS_MF = 0x0BA000
WS_D = 0x0C0000
WS_H1 = 0x100000
WS_Y = 0x110000
WS_M = 0x120000
WS_GU = 0x160000
LGD = 0x100000
WS_STAMP = 0x300000
WS_SIZE = 0x380000

L_SV = 0
L_H1V = 2048
L_OV = 2304
L_H2V = 2816
L_ACT = 2944
L_MX = 3392
L_LS = 3648
L_QL = 4096
L_PL = 4096 + 2560
QSTR = 320
L_T = 10240
L_W0A = L_T
L_W1 = L_T + 16384
L_W0B = L_T
L_W3 = L_T + 65536
L_W5 = L_W3
L_W4 = L_T
L_V = L_T + 114688
LDS_BYTES = L_T + 114688 + 32768

S_X, S_R, S_A, S_W = "s3", "s4", "s5", "s6"
S_T = ["s8", "s9", "s10", "s11"]
S_CNT, S_SO, S_T0, S_T1 = "s12", "s13", "s14", "s15"
P_X, P_K, P_V, P_WQ, P_WO, P_BX, P_WG, P_WU, P_WD, P_C, P_WM, P_OUT, P_DBG, P_WS = [16 + 2 * i for i in range(14)]
R_WS, R_WM, R_WQ, R_A, R_B, R_C, R_D, R_X, R_CC, R_OUT = 44, 48, 52, 56, 60, 64, 68, 72, 76, 80
S_T2, S_T3, S_T4, S_T5 = "s84", "s85", "s86", "s87"
S_LOG2E, S_HI16 = "s88", "s89"
S_ST = 90

V_TID, V_L, V_RHO, V_DMA, V_TR, V_G16, V_MASK, V_L16, V_STAMP = "v0", "v1", "v2", "v3", "v4", "v5", "v6", "v7", "v8"
V_ACCM = "v9"


def v(i):
    return "v%d" % i


def vr(i, n):
    return "v[%d:%d]" % (i, i + n - 1)


def sr(i, n=4):
    return "s[%d:%d]" % (i, i + n - 1)


class Gen:
    def __init__(self, cfg):
        self.c = cfg
        self.e = Emitter()
        self.nstamp = 0

    def srd(self, r, ptr, nbytes):
        e = self.e
        e("s_mov_b32 s%d, s%d" % (r, ptr))
        e("s_mov_b32 s%d, s%d" % (r + 1, ptr + 1))
        e("s_mov_b32 s%d, 0x%x" % (r + 2, nbytes))
        e("s_mov_b32 s%d, 0x00020000" % (r + 3))

    def stamp(self, idx):
        if not self.c.stamps:
            return
        e = self.e
        e("s_memrealtime s[%d:%d]" % (S_ST, S_ST + 1))
        e("s_waitcnt lgkmcnt(0)")
        e("v_writelane_b32 %s, s%d, %d" % (V_STAMP, S_ST, idx))

    def stamp_val(self, idx, sreg):
        if not self.c.stamps:
            return
        self.e("v_writelane_b32 %s, %s, %d" % (V_STAMP, sreg, idx))

    def dump_stamps(self):
        if not self.c.stamps:
            return
        e = self.e
        e("s_mov_b64 exec, -1")
        e("s_lshl_b32 %s, s2, 3" % S_T0)
        e("s_add_u32 %s, %s, %s" % (S_T0, S_T0, S_W))
        e("s_lshl_b32 %s, %s, 8" % (S_T0, S_T0))
        e("s_add_u32 %s, %s, 0x%x" % (S_T0, S_T0, WS_STAMP))
        e("v_lshlrev_b32 v10, 2, %s" % V_L)
        e("buffer_store_dword %s, v10, %s, %s offen" % (V_STAMP, sr(R_WS), S_T0))

    def dma(self, voff, srd, soff, m0expr):
        e = self.e
        e(m0expr)
        e("buffer_load_dwordx4 %s, %s, %s offen%s lds" % (voff, sr(srd), soff, " nt" if self.c.nt else ""))

    def rb_pair(self, a, b, t):
        e = self.e
        e("v_cvt_pk_bf16_f32 %s, %s, %s" % (t, a, b))
        e("v_lshlrev_b32 %s, 16, %s" % (a, t))
        e("v_and_b32 %s, %s, %s" % (b, S_HI16, t))

    def rb4(self, base, t0, t1):
        e = self.e
        e("v_cvt_pk_bf16_f32 %s, %s, %s" % (t0, v(base), v(base + 1)))
        e("v_cvt_pk_bf16_f32 %s, %s, %s" % (t1, v(base + 2), v(base + 3)))
        e("v_lshlrev_b32 %s, 16, %s" % (v(base), t0))
        e("v_and_b32 %s, %s, %s" % (v(base + 1), S_HI16, t0))
        e("v_lshlrev_b32 %s, 16, %s" % (v(base + 2), t1))
        e("v_and_b32 %s, %s, %s" % (v(base + 3), S_HI16, t1))

    def rb1(self, a):
        e = self.e
        e("v_cvt_pk_bf16_f32 %s, %s, %s" % (a, a, a))
        e("v_and_b32 %s, %s, %s" % (a, S_HI16, a))

    def unpack2(self, src, lo, hi):
        e = self.e
        e("v_lshlrev_b32 %s, 16, %s" % (lo, src))
        e("v_and_b32 %s, %s, %s" % (hi, S_HI16, src))

    def dpp_red(self, op, regs, levels):
        e = self.e
        pat = {1: "quad_perm:[1,0,3,2]", 2: "quad_perm:[2,3,0,1]", 4: "row_half_mirror", 8: "row_mirror", "x8": "row_ror:8"}
        for lv in levels:
            for r in regs:
                e("%s_dpp %s, %s, %s %s row_mask:0xf bank_mask:0xf" % (op, r, r, r, pat[lv]))

    def swap_red(self, op, regs, tmps, which):
        e = self.e
        for r, t in zip(regs, tmps):
            e("v_mov_b32 %s, %s" % (t, r))
        for r, t in zip(regs, tmps):
            e("v_permlane%d_swap_b32 %s, %s" % (which, t, r))
        for r, t in zip(regs, tmps):
            e("%s %s, %s, %s" % (op, r, r, t))

    def tagins(self, dst, src):
        e = self.e
        for i in range(4):
            e("v_bfi_b32 %s, %s, %s, %s" % (v(dst + i), V_MASK, v(src + i), S_T[i]))

    def tagchk(self, grs):
        e = self.e
        first = True
        for g in grs:
            for i in range(4):
                if first:
                    e("v_xor_b32 %s, %s, %s" % (V_ACCM, S_T[i], v(g + i)))
                    first = False
                else:
                    e("v_bitop3_b32 %s, %s, %s, %s bitop3:0xde" % (V_ACCM, v(g + i), V_ACCM, S_T[i]))
        e("v_and_b32 %s, 0xff, %s" % (V_ACCM, V_ACCM))
        e("v_cmp_ne_u32 vcc, 0, %s" % V_ACCM)

    def poll(self, loads, grs, local, sleep=1, pre=None, stamp_cnt=None):
        e = self.e
        lp, dn = e.newlabel("L_poll"), e.newlabel("L_done")
        e("s_mov_b32 %s, 0" % S_CNT)
        e.label(lp)
        for ld in loads:
            e(ld)
        e("s_waitcnt vmcnt(0)")
        self.tagchk(grs)
        e("s_cbranch_vccz %s" % dn)
        e("s_add_u32 %s, %s, 1" % (S_CNT, S_CNT))
        if local:
            e("s_cmp_eq_u32 %s, %d" % (S_CNT, self.c.l_tries))
            e("s_cselect_b32 %s, 0x%x, 0" % (S_T0, LGD))
            e("s_add_u32 %s, %s, %s" % (S_SO, S_SO, S_T0))
        e("s_cmp_ge_u32 %s, %d" % (S_CNT, self.c.spin_limit))
        e("s_cbranch_scc1 %s" % dn)
        if sleep:
            e("s_sleep %d" % sleep)
        e("s_branch %s" % lp)
        e.label(dn)
        if stamp_cnt is not None:
            self.stamp_val(stamp_cnt, S_CNT)

    def publish(self, data, voff, local, execmask=None):
        e = self.e
        if execmask is not None:
            self.setexec(execmask)
        if local:
            e("buffer_store_dwordx4 %s, %s, %s, %s offen" % (vr(data, 4), voff, sr(R_WS), S_SO))
            e("s_add_u32 %s, %s, 0x%x" % (S_T0, S_SO, LGD))
            e("buffer_store_dwordx4 %s, %s, %s, %s offen sc1" % (vr(data, 4), voff, sr(R_WS), S_T0))
        else:
            e("buffer_store_dwordx4 %s, %s, %s, %s offen sc1" % (vr(data, 4), voff, sr(R_WS), S_SO))
        if execmask is not None:
            e("s_mov_b64 exec, -1")

    def setexec(self, mask):
        e = self.e
        lo, hi = mask & 0xffffffff, mask >> 32
        e("s_mov_b32 exec_lo, 0x%x" % lo)
        e("s_mov_b32 exec_hi, 0x%x" % hi)

    def sum16(self, base, local, res, sleep=1, stamp_cnt=None):
        e = self.e
        e("v_lshrrev_b32 v10, 5, %s" % V_L)
        e("v_lshlrev_b32 v10, 12, v10")
        e("v_and_b32 v11, 31, %s" % V_L)
        e("v_lshl_add_u32 v10, v11, 4, v10")
        loads = ["buffer_load_dwordx4 %s, v10, %s, %s offen offset:%d sc1" % (vr(base + 4 * t, 4), sr(R_WS), S_SO, 512 * t) for t in range(8)]
        self.poll(loads, [base + 4 * t for t in range(8)], local, sleep=sleep, stamp_cnt=stamp_cnt)
        self.tree_sum(base, 8, res)
        self.swap_red("v_add_f32", [v(res + i) for i in range(4)], ["v11", "v12", "v13", "v14"], 32)

    def tree_sum(self, base, n, res):
        e = self.e
        cur = [base + 4 * t for t in range(n)]
        while len(cur) > 1:
            nxt = []
            for i in range(0, len(cur), 2):
                a, b = cur[i], cur[i + 1]
                d = res if len(cur) == 2 else a
                e("v_pk_add_f32 %s, %s, %s" % (vr(d, 2), vr(a, 2), vr(b, 2)))
                e("v_pk_add_f32 %s, %s, %s" % (vr(d + 2, 2), vr(a + 2, 2), vr(b + 2, 2)))
                nxt.append(d)
            cur = nxt

    def red_scatter(self, a, out):
        e = self.e
        e("v_permlane32_swap_b32 %s, %s" % (v(a), v(a + 2)))
        e("v_permlane32_swap_b32 %s, %s" % (v(a + 1), v(a + 3)))
        e("v_add_f32 %s, %s, %s" % (v(a), v(a), v(a + 2)))
        e("v_add_f32 %s, %s, %s" % (v(a + 1), v(a + 1), v(a + 3)))
        e("v_permlane16_swap_b32 %s, %s" % (v(a), v(a + 1)))
        e("v_add_f32 %s, %s, %s" % (out, v(a), v(a + 1)))

    def tr_frags(self, dst, vaddr, ksteps, extra_off=0, s0=0):
        e = self.e
        for i in range(ksteps):
            s = s0 + i
            for hf in range(2):
                e("ds_read_b64_tr_b16 %s, %s offset:%d" % (vr(dst + 4 * i + 2 * hf, 2), vaddr, extra_off + (4 * s + 2 * hf) * 1024))

    def x_frags(self, dst, vaddr, ksteps, off):
        e = self.e
        for s in range(ksteps):
            e("ds_read_b128 %s, %s offset:%d" % (vr(dst + 4 * s, 4), vaddr, off + 64 * s))

    def mfma_chain(self, acc, afr, bfr, ksteps):
        e = self.e
        for s in range(ksteps):
            e("v_mfma_f32_16x16x32_bf16 %s, %s, %s, %s" % (vr(acc, 4), vr(afr + 4 * s, 4), vr(bfr + 4 * s, 4), "0" if s == 0 else vr(acc, 4)))

    def perm_off8(self, dst, q, t):
        e = self.e
        e("v_and_b32 %s, 3, %s" % (dst, q))
        e("v_lshlrev_b32 %s, 4, %s" % (dst, dst))
        e("v_and_b32 %s, 4, %s" % (t, q))
        e("v_lshl_add_u32 %s, %s, 1, %s" % (dst, t, dst))

    def silu(self, x, t):
        e = self.e
        e("v_mul_f32 %s, %s, %s" % (t, S_LOG2E, x))
        e("v_exp_f32 %s, -%s" % (t, t))
        e("v_add_f32 %s, 1.0, %s" % (t, t))
        e("v_rcp_f32 %s, %s" % (t, t))
        e("v_mul_f32 %s, %s, %s" % (x, x, t))

    def ln_apply(self, xb, cab, sab, mean, rden, t0, t1):
        e = self.e
        for i in range(4):
            e("v_sub_f32 %s, %s, %s" % (v(xb + i), v(xb + i), mean))
        self.rb4(xb, t0, t1)
        for i in range(4):
            e("v_mul_f32 %s, %s, %s" % (v(xb + i), v(xb + i), rden))
        self.rb4(xb, t0, t1)
        if cab is not None:
            self.ln_mod(xb, cab, sab, t0, t1)

    def ln_mod(self, xb, cab, sab, t0, t1):
        e = self.e
        for i in range(4):
            e("v_add_f32 %s, 1.0, %s" % (v(cab + i), v(cab + i)))
        self.rb4(cab, t0, t1)
        for i in range(4):
            e("v_mul_f32 %s, %s, %s" % (v(xb + i), v(xb + i), v(cab + i)))
        self.rb4(xb, t0, t1)
        for i in range(4):
            e("v_add_f32 %s, %s, %s" % (v(xb + i), v(xb + i), v(sab + i)))

    def ln_den(self, var, out):
        e = self.e
        self.rb1(var)
        e("v_add_f32 %s, 0x%x, %s" % (var, f2u(1e-5), var))
        self.rb1(var)
        e("v_sqrt_f32 %s, %s" % (var, var))
        self.rb1(var)
        e("v_rcp_f32 %s, %s" % (out, var))

    def barrier(self):
        self.e("s_barrier")

    def build(self):
        e, c = self.e, self.c
        nt = " nt" if c.nt else ""
        e.raw("; @launch grid=(256,1,1) block=(512,1,1) lds=%d" % LDS_BYTES)
        e.raw('.amdgcn_target "amdgcn-amd-amdhsa--gfx950"')
        e.raw(".text")
        e.raw(".globl %s_kernel" % NAME)
        e.raw(".p2align 8")
        e.raw(".type %s_kernel,@function" % NAME)
        e.label("%s_kernel" % NAME)
        e("s_cmp_ge_u32 s2, 256")
        e("s_cbranch_scc1 L_end")
        e("s_load_dwordx16 s[16:31], s[0:1], 0")
        e("s_load_dwordx8 s[32:39], s[0:1], 64")
        e("s_load_dwordx4 s[40:43], s[0:1], 96")
        e("v_mov_b32 %s, 0" % V_STAMP)
        e("s_and_b32 %s, s2, 7" % S_X)
        e("s_lshr_b32 %s, s2, 3" % S_R)
        e("s_and_b32 %s, %s, 15" % (S_A, S_R))
        e("v_and_b32 %s, 63, v0" % V_L)
        e("v_lshrrev_b32 v10, 6, v0")
        e("v_readfirstlane_b32 %s, v10" % S_W)
        e("s_mov_b32 %s, 0x%x" % (S_LOG2E, f2u(1.4426950408889634)))
        e("s_mov_b32 %s, 0xffff0000" % S_HI16)
        e("v_lshrrev_b32 %s, 3, %s" % (V_RHO, V_L))
        e("v_lshrrev_b32 v10, 1, %s" % V_L)
        e("v_lshrrev_b32 v11, 4, %s" % V_L)
        e("v_xor_b32 v10, v10, v11")
        e("v_and_b32 v10, 3, v10")
        e("v_lshlrev_b32 v10, 5, v10")
        e("v_and_b32 v12, 1, %s" % V_L)
        e("v_lshl_add_u32 %s, v12, 4, v10" % V_DMA)
        e("v_lshlrev_b32 %s, 4, v11" % V_G16)
        e("v_lshlrev_b32 %s, 4, %s" % (V_L16, V_L))
        e("v_lshrrev_b32 v10, 2, %s" % V_L)
        e("v_lshlrev_b32 v10, 7, v10")
        e("v_and_b32 v11, 3, %s" % V_RHO)
        e("v_lshl_add_u32 v10, v11, 5, v10")
        e("v_and_b32 v11, 3, %s" % V_L)
        e("v_lshl_add_u32 %s, v11, 3, v10" % V_TR)
        e("v_mov_b32 %s, 0xffffff00" % V_MASK)
        e("s_waitcnt lgkmcnt(0)")
        e("s_load_dword s7, s[%d:%d], 0" % (P_WS, P_WS + 1))
        self.srd(R_WM, P_WM, 1024 * 6144 * 2)
        self.srd(R_CC, P_C, 2048)
        self.srd(R_WQ, P_WQ, 1024 * 4096 * 2)
        self.srd(R_WS, P_WS, WS_SIZE)
        self.srd(R_X, P_X, 2048)
        self.stamp(0)
        e("s_cmp_eq_u32 %s, 7" % S_W)
        e("s_cbranch_scc0 L_nox")
        e("v_lshlrev_b32 v10, 5, %s" % V_L)
        e("buffer_load_dwordx4 v[32:35], v10, %s, 0 offen" % sr(R_X))
        e("buffer_load_dwordx4 v[36:39], v10, %s, 0 offen offset:16" % sr(R_X))
        e("v_and_b32 v11, 31, %s" % V_L)
        e("v_lshlrev_b32 v11, 3, v11")
        e("s_lshl_b32 %s, %s, 8" % (S_T0, S_X))
        e("buffer_load_dwordx2 v[40:41], v11, %s, %s offen" % (sr(R_X), S_T0))
        e.label("L_nox")
        e("v_lshlrev_b32 v10, 3, v0")
        e("buffer_load_dwordx2 v[12:13], v10, %s, 0 offen" % sr(R_CC))
        e("s_movk_i32 %s, 12288" % S_T0)
        e("v_mul_lo_u32 v14, %s, %s" % (V_RHO, S_T0))
        e("v_add_u32 v14, v14, %s" % V_DMA)
        e("s_lshr_b32 %s, %s, 2" % (S_T1, S_R))
        e("s_lshl_b32 %s, %s, 7" % (S_T1, S_T1))
        e("s_lshl_b32 %s, %s, 4" % (S_T2, S_W))
        e("s_add_u32 %s, %s, %s" % (S_T1, S_T1, S_T2))
        e("s_mul_i32 %s, %s, 12288" % (S_T1, S_T1))
        e("s_bfe_u32 %s, %s, 0x10001" % (S_T2, S_R))
        e("s_lshl_b32 %s, %s, 11" % (S_T2, S_T2))
        e("s_add_u32 %s, %s, %s" % (S_T1, S_T1, S_T2))
        e("s_lshl_b32 %s, %s, 8" % (S_T2, S_X))
        e("s_add_u32 %s, %s, %s" % (S_T1, S_T1, S_T2))
        e("s_and_b32 %s, %s, 1" % (S_T2, S_R))
        e("s_lshl_b32 %s, %s, 7" % (S_T2, S_T2))
        e("s_add_u32 %s, %s, %s" % (S_T1, S_T1, S_T2))
        e("s_lshl_b32 %s, %s, 11" % (S_T3, S_W))
        self.dma("v14", R_WM, S_T1, "s_add_u32 m0, %s, %d" % (S_T3, L_W0A))
        e("s_add_u32 %s, %s, %d" % (S_T1, S_T1, 8 * 12288))
        self.dma("v14", R_WM, S_T1, "s_add_u32 m0, %s, %d" % (S_T3, L_W0A + 1024))
        e("v_lshl_add_u32 v15, %s, 13, %s" % (V_RHO, V_DMA))
        e("s_lshl_b32 %s, %s, 7" % (S_T1, S_X))
        e("s_lshl_b32 %s, %s, 4" % (S_T2, S_W))
        e("s_add_u32 %s, %s, %s" % (S_T1, S_T1, S_T2))
        e("s_lshl_b32 %s, %s, 13" % (S_T1, S_T1))
        e("s_lshl_b32 %s, %s, 8" % (S_T2, S_R))
        e("s_add_u32 %s, %s, %s" % (S_T1, S_T1, S_T2))
        for i in range(2):
            for cb in range(2):
                e("s_add_u32 %s, %s, %d" % (S_T2, S_T1, i * 8 * 8192 + cb * 128))
                self.dma("v15", R_WQ, S_T2, "s_add_u32 m0, %s, %d" % (S_T3, L_W1 + cb * 16384 + i * 1024))
        e("s_waitcnt lgkmcnt(0)")
        e("s_and_b32 %s, s7, 0x7f7f7f7f" % S_T0)
        e("s_add_u32 %s, %s, 0x0b255301" % (S_T0, S_T0))
        e("s_and_b32 %s, s7, 0x80808080" % S_T1)
        e("s_xor_b32 %s, %s, %s" % (S_T[0], S_T0, S_T1))
        e("s_lshr_b32 %s, %s, 8" % (S_T[1], S_T[0]))
        e("s_lshr_b32 %s, %s, 16" % (S_T[2], S_T[0]))
        e("s_lshr_b32 %s, %s, 24" % (S_T[3], S_T[0]))
        e("s_cmp_ge_u32 %s, 4" % S_W)
        e("s_cbranch_scc1 L_nosilu")
        e("s_waitcnt vmcnt(6)")
        self.unpack2("v12", "v16", "v17")
        self.unpack2("v13", "v18", "v19")
        for i in range(4):
            self.silu(v(16 + i), v(20 + i))
        e("v_cvt_pk_bf16_f32 v16, v16, v17")
        e("v_cvt_pk_bf16_f32 v17, v18, v19")
        self.perm_off8("v10", "v0", "v11")
        e("v_lshrrev_b32 v11, 3, v0")
        e("v_lshl_add_u32 v10, v11, 6, v10")
        e("ds_write_b64 v10, v[16:17] offset:%d" % L_SV)
        e("s_waitcnt vmcnt(4) lgkmcnt(0)")
        e("s_branch L_b1")
        e.label("L_nosilu")
        e("s_waitcnt vmcnt(4)")
        e.label("L_b1")
        self.stamp(1)
        self.barrier()
        self.stamp(2)
        e("s_cmp_ge_u32 %s, 4" % S_W)
        e("s_cbranch_scc1 L_nop0")
        e("s_lshl_b32 %s, %s, 5" % (S_T0, S_W))
        e("v_xor_b32 v10, %s, %s" % (S_T0, V_TR))
        self.tr_frags(32, "v10", 4, extra_off=L_W0A)
        e("s_lshr_b32 %s, %s, 2" % (S_T1, S_R))
        e("s_lshl_b32 %s, %s, 8" % (S_T1, S_T1))
        e("v_add_u32 v11, %s, %s" % (S_T1, V_G16))
        self.x_frags(48, "v11", 4, L_SV)
        e("s_lshl_b32 %s, %s, 13" % (S_SO, S_X))
        e("s_lshl_b32 %s, %s, 8" % (S_T1, S_R))
        e("s_add_u32 %s, %s, %s" % (S_SO, S_SO, S_T1))
        e("s_lshl_b32 %s, %s, 6" % (S_T1, S_W))
        e("s_add_u32 %s, %s, %s" % (S_SO, S_SO, S_T1))
        e("s_add_u32 %s, %s, 0x%x" % (S_SO, S_SO, WS_H1))
        e("s_waitcnt lgkmcnt(0)")
        self.mfma_chain(64, 32, 48, 4)
        self.tagins(68, 64)
        self.publish(68, V_G16, True, 0x0001000100010001)
        self.stamp(3)
        e("s_waitcnt vmcnt(2)")
        e("s_branch L_b2")
        e.label("L_nop0")
        e("s_cmp_eq_u32 %s, 7" % S_W)
        e("s_cbranch_scc0 L_w456b")
        for i in range(8):
            self.unpack2(v(32 + i), v(48 + 2 * i), v(49 + 2 * i))
        for i in range(4):
            e("v_pk_add_f32 %s, %s, %s" % (vr(64 + 2 * i, 2), vr(48 + 4 * i, 2), vr(50 + 4 * i, 2)))
        e("v_pk_add_f32 v[64:65], v[64:65], v[66:67]")
        e("v_pk_add_f32 v[68:69], v[68:69], v[70:71]")
        e("v_pk_add_f32 v[64:65], v[64:65], v[68:69]")
        e("v_add_f32 v64, v64, v65")
        self.dpp_red("v_add_f32", ["v64"], [1, 2, 4, 8])
        self.swap_red("v_add_f32", ["v64"], ["v65"], 16)
        self.swap_red("v_add_f32", ["v64"], ["v65"], 32)
        e("v_mul_f32 v64, 0x%x, v64" % f2u(1.0 / 1024))
        e("v_mov_b32 v66, 0")
        for i in range(16):
            e("v_sub_f32 v67, %s, v64" % v(48 + i))
            e("v_fmac_f32 v66, v67, v67")
        self.dpp_red("v_add_f32", ["v66"], [1, 2, 4, 8])
        self.swap_red("v_add_f32", ["v66"], ["v65"], 16)
        self.swap_red("v_add_f32", ["v66"], ["v65"], 32)
        e("v_mul_f32 v66, 0x%x, v66" % f2u(1.0 / 1024))
        self.rb1("v64")
        self.ln_den("v66", "v67")
        self.unpack2("v40", "v72", "v73")
        self.unpack2("v41", "v74", "v75")
        self.ln_apply(72, None, None, "v64", "v67", "v68", "v69")
        e("s_lshl_b32 %s, %s, 13" % (S_SO, S_X))
        e("s_add_u32 %s, %s, 0x%x" % (S_SO, S_SO, WS_H1))
        e("v_add_u32 v10, 4096, %s" % V_L16)
        loads = ["buffer_load_dwordx4 %s, %s, %s, %s offen offset:%d sc1" % (vr(32 + 4 * t, 4), V_L16 if t < 4 else "v10", sr(R_WS), S_SO, 1024 * (t & 3)) for t in range(8)]
        self.stamp(3)
        self.poll(loads, [32 + 4 * t for t in range(8)], True, stamp_cnt=40)
        self.stamp(4)
        self.tree_sum(32, 8, 64)
        self.rb4(64, "v68", "v69")
        for i in range(4):
            e("v_mov_b32 %s, %s" % (v(76 + i), v(64 + i)))
        for i in range(4):
            e("v_permlane32_swap_b32 %s, %s" % (v(76 + i), v(64 + i)))
        self.ln_mod(72, 64, 76, "v68", "v69")
        e("v_cvt_pk_bf16_f32 v68, v72, v73")
        e("v_cvt_pk_bf16_f32 v69, v74, v75")
        self.perm_off8("v10", V_L, "v11")
        e("v_bfe_u32 v11, %s, 3, 2" % V_L)
        e("v_lshl_add_u32 v10, v11, 6, v10")
        e("ds_write_b64 v10, v[68:69] offset:%d" % L_H1V)
        e("s_waitcnt lgkmcnt(0)")
        e("s_branch L_b2")
        e.label("L_w456b")
        e("s_waitcnt vmcnt(0)")
        e.label("L_b2")
        self.stamp(5)
        self.barrier()
        self.stamp(6)
        e("s_and_b32 %s, %s, 3" % (S_T0, S_W))
        e("s_lshl_b32 %s, %s, 5" % (S_T0, S_T0))
        e("v_xor_b32 v30, %s, %s" % (S_T0, V_TR))
        e("s_lshr_b32 %s, %s, 2" % (S_T1, S_W))
        e("s_lshl_b32 %s, %s, 14" % (S_T1, S_T1))
        e("v_add_u32 v10, %s, v30" % S_T1)
        self.tr_frags(32, "v10", 4, extra_off=L_W1)
        self.x_frags(48, V_G16, 4, L_H1V)
        e("s_lshl_b32 %s, %s, 12" % (S_SO, S_R))
        e("s_lshl_b32 %s, %s, 9" % (S_T1, S_X))
        e("s_add_u32 %s, %s, %s" % (S_SO, S_SO, S_T1))
        e("s_lshl_b32 %s, %s, 6" % (S_T1, S_W))
        e("s_add_u32 %s, %s, %s" % (S_SO, S_SO, S_T1))
        e("s_add_u32 %s, %s, 0x%x" % (S_SO, S_SO, WS_Q))
        e("s_waitcnt lgkmcnt(0)")
        self.mfma_chain(64, 32, 48, 4)
        self.tagins(68, 64)
        self.publish(68, V_G16, False, 0x0001000100010001)
        self.stamp(7)
        e("s_cmp_ge_u32 %s, 16" % S_R)
        e("s_cbranch_scc1 L_classB")
        self.classA()
        e.label("L_classB")
        self.classB()
        e.label("L_fin")
        self.dump_stamps()
        e.label("L_end")
        e("s_endpgm")
        e.raw('.section .rodata,"a"')
        e.raw(".p2align 6")
        e.raw(".amdhsa_kernel %s_kernel" % NAME)
        e.raw("  .amdhsa_next_free_vgpr 256")
        e.raw("  .amdhsa_next_free_sgpr 102")
        e.raw("  .amdhsa_accum_offset 256")
        e.raw("  .amdhsa_group_segment_fixed_size 0")
        e.raw("  .amdhsa_kernarg_size 112")
        e.raw("  .amdhsa_user_sgpr_count 2")
        e.raw("  .amdhsa_user_sgpr_kernarg_segment_ptr 1")
        e.raw("  .amdhsa_system_sgpr_workgroup_id_x 1")
        e.raw("  .amdhsa_float_denorm_mode_32 3")
        e.raw(".end_amdhsa_kernel")
        return e.text()

    def classA(self):
        e, c = self.e, self.c
        self.srd(R_A, P_WO, 4096 * 1024 * 2)
        self.srd(R_B, P_WD, 3584 * 1024 * 2)
        self.srd(R_OUT, P_OUT, 2048)
        e("v_lshl_add_u32 v15, %s, 11, %s" % (V_RHO, V_DMA))
        e("s_lshl_b32 %s, %s, 8" % (S_T1, S_A))
        e("s_lshl_b32 %s, %s, 5" % (S_T2, S_W))
        e("s_add_u32 %s, %s, %s" % (S_T1, S_T1, S_T2))
        e("s_lshl_b32 %s, %s, 11" % (S_T1, S_T1))
        e("s_lshl_b32 %s, %s, 8" % (S_T2, S_X))
        e("s_add_u32 %s, %s, %s" % (S_T1, S_T1, S_T2))
        e("s_lshl_b32 %s, %s, 12" % (S_T3, S_W))
        for i in range(4):
            for cb in range(2):
                e("s_add_u32 %s, %s, %d" % (S_T2, S_T1, i * 8 * 2048 + cb * 128))
                self.dma("v15", R_A, S_T2, "s_add_u32 m0, %s, %d" % (S_T3, L_W3 + cb * 32768 + i * 1024))
        self.barrier()
        e("s_mul_i32 %s, %s, %d" % (S_T1, S_A, 64 * 12288))
        e("s_lshr_b32 %s, %s, 1" % (S_T2, S_W))
        e("s_lshl_b32 %s, %s, 11" % (S_T2, S_T2))
        e("s_add_u32 %s, %s, %s" % (S_T1, S_T1, S_T2))
        e("s_lshl_b32 %s, %s, 8" % (S_T2, S_X))
        e("s_add_u32 %s, %s, %s" % (S_T1, S_T1, S_T2))
        e("s_and_b32 %s, %s, 1" % (S_T2, S_W))
        e("s_lshl_b32 %s, %s, 7" % (S_T2, S_T2))
        e("s_add_u32 %s, %s, %s" % (S_T1, S_T1, S_T2))
        e("s_lshl_b32 %s, %s, 13" % (S_T3, S_W))
        for i in range(8):
            e("s_add_u32 %s, %s, %d" % (S_T2, S_T1, 4096 + i * 8 * 12288))
            self.dma("v14", R_WM, S_T2, "s_add_u32 m0, %s, %d" % (S_T3, L_W0B + i * 1024))
        e("s_waitcnt vmcnt(8)")
        self.stamp(8)
        self.barrier()
        e("s_lshr_b32 %s, %s, 2" % (S_T1, S_W))
        e("s_lshl_b32 %s, %s, 15" % (S_T1, S_T1))
        e("s_add_u32 %s, %s, %d" % (S_T1, S_T1, L_W3))
        e("v_add_u32 v10, %s, v30" % S_T1)
        self.tr_frags(128, "v10", 8)
        e("s_lshl_b32 %s, %s, 7" % (S_T1, S_A))
        e("v_add_u32 v11, %s, %s" % (S_T1, V_G16))
        self.x_frags(48, "v11", 2, L_SV)
        e("s_waitcnt vmcnt(0)")
        self.stamp(9)
        for u in range(4):
            e("v_xor_b32 v10, %d, %s" % (u << 5, V_TR))
            e("v_add_u32 v10, %s, v10" % S_T3)
            self.tr_frags(64 + 8 * u, "v10", 2, extra_off=L_W0B)
        e("s_lshl_b32 %s, %s, 15" % (S_SO, S_X))
        e("s_lshr_b32 %s, %s, 1" % (S_T1, S_W))
        e("s_lshl_b32 %s, %s, 13" % (S_T1, S_T1))
        e("s_add_u32 %s, %s, %s" % (S_SO, S_SO, S_T1))
        e("s_lshl_b32 %s, %s, 9" % (S_T1, S_A))
        e("s_add_u32 %s, %s, %s" % (S_SO, S_SO, S_T1))
        e("s_and_b32 %s, %s, 1" % (S_T1, S_W))
        e("s_lshl_b32 %s, %s, 8" % (S_T1, S_T1))
        e("s_add_u32 %s, %s, %s" % (S_SO, S_SO, S_T1))
        e("s_add_u32 %s, %s, 0x%x" % (S_SO, S_SO, WS_M))
        e("v_and_b32 v12, 15, %s" % V_L)
        e("v_lshl_add_u32 v12, v12, 6, %s" % V_G16)
        e("s_waitcnt lgkmcnt(0)")
        for u in range(4):
            self.mfma_chain(96 + 4 * u, 64 + 8 * u, 48, 2)
        for u in range(4):
            self.setexec(0x0001000100010001 << u)
            self.tagins(112, 96 + 4 * u)
        self.publish(112, "v12", True, 0x000f000f000f000f)
        self.stamp(10)
        e("s_cmp_eq_u32 %s, 0" % S_A)
        e("s_cbranch_scc0 L_A_nored1")
        e("s_cmp_ge_u32 %s, 3" % S_W)
        e("s_cbranch_scc1 L_A_nored1")
        e("s_lshl_b32 %s, %s, 15" % (S_SO, S_X))
        e("s_lshl_b32 %s, %s, 13" % (S_T1, S_W))
        e("s_add_u32 %s, %s, %s" % (S_SO, S_SO, S_T1))
        e("s_add_u32 %s, %s, 0x%x" % (S_SO, S_SO, WS_M))
        self.sum16(32, True, 160)
        self.rb4(160, "v11", "v12")
        e("s_cmp_eq_u32 %s, 0" % S_W)
        e("s_cbranch_scc1 L_A_w0mod")
        self.tagins(112, 160)
        e("s_lshl_b32 %s, %s, 10" % (S_SO, S_X))
        e("s_lshl_b32 %s, %s, 9" % (S_T1, S_W))
        e("s_add_u32 %s, %s, %s" % (S_SO, S_SO, S_T1))
        e("s_add_u32 %s, %s, 0x%x" % (S_SO, S_SO, WS_MF - 512))
        self.publish(112, V_L16, False, 0xffffffff)
        e("s_branch L_A_nored1")
        e.label("L_A_w0mod")
        e("s_lshl_b32 %s, %s, 15" % (S_SO, S_X))
        e("s_add_u32 %s, %s, 0x%x" % (S_SO, S_SO, WS_M + 3 * 8192))
        self.sum16(32, True, 164)
        self.rb4(164, "v11", "v12")
        e("v_and_b32 v11, 31, %s" % V_L)
        e("v_lshlrev_b32 v11, 3, v11")
        e("s_lshl_b32 %s, %s, 8" % (S_T0, S_X))
        e("buffer_load_dwordx2 v[172:173], v11, %s, %s offen" % (sr(R_X), S_T0))
        e.label("L_A_nored1")
        self.stamp(11)
        e("s_lshl_b32 %s, %s, 1" % (S_T1, S_A))
        e("s_lshr_b32 %s, %s, 2" % (S_T2, S_W))
        e("s_add_u32 %s, %s, %s" % (S_T1, S_T1, S_T2))
        e("s_lshl_b32 %s, %s, 14" % (S_SO, S_T1))
        e("s_and_b32 %s, %s, 3" % (S_T2, S_W))
        e("s_lshl_b32 %s, %s, 7" % (S_T2, S_T2))
        e("s_add_u32 %s, %s, %s" % (S_SO, S_SO, S_T2))
        e("s_add_u32 %s, %s, 0x%x" % (S_SO, S_SO, WS_O))
        e("v_and_b32 v10, 7, %s" % V_L)
        e("v_lshlrev_b32 v10, 4, v10")
        e("v_lshl_add_u32 v10, %s, 11, v10" % V_RHO)
        e("s_lshr_b32 %s, %s, 3" % (S_T2, S_T1))
        e("s_lshl_b32 %s, %s, 12" % (S_T2, S_T2))
        e("s_and_b32 %s, %s, 7" % (S_T3, S_T1))
        e("s_lshl_b32 %s, %s, 4" % (S_T3, S_T3))
        e("s_add_u32 %s, %s, %s" % (S_T2, S_T2, S_T3))
        e("s_add_u32 %s, %s, 0x%x" % (S_T2, S_T2, WS_S))
        e("v_lshlrev_b32 v11, 9, %s" % V_RHO)
        loads = ["buffer_load_dwordx4 %s, v10, %s, %s offen offset:%d sc1" % (vr(32 + 4 * t, 4), sr(R_WS), S_SO, 512 * t) for t in range(4)]
        loads += ["buffer_load_dwordx4 %s, v11, %s, %s offen offset:%d sc1" % (vr(48 + 4 * t, 4), sr(R_WS), S_T2, 128 * t) for t in range(4)]
        self.poll(loads, [32 + 4 * t for t in range(8)], False, sleep=2, stamp_cnt=41)
        self.stamp(12)
        for t in range(4):
            e("v_and_b32 %s, %s, %s" % (v(48 + 4 * t), S_HI16, v(48 + 4 * t)))
        e("v_max3_f32 v64, v48, v52, v56")
        e("v_max_f32 v64, v64, v60")
        self.dpp_red("v_max_f32", ["v64"], ["x8"])
        self.swap_red("v_max_f32", ["v64"], ["v65"], 16)
        self.swap_red("v_max_f32", ["v64"], ["v65"], 32)
        for t in range(4):
            e("v_sub_f32 %s, %s, v64" % (v(66 + t), v(48 + 4 * t)))
        for t in range(4):
            e("v_mul_f32 %s, %s, %s" % (v(66 + t), S_LOG2E, v(66 + t)))
        for t in range(4):
            e("v_exp_f32 %s, %s" % (v(66 + t), v(66 + t)))
        e("v_mul_f32 v70, v66, v49")
        for t in range(1, 4):
            e("v_fmac_f32 v70, %s, %s" % (v(66 + t), v(49 + 4 * t)))
        for i in range(4):
            e("v_mul_f32 %s, v66, %s" % (v(72 + i), v(32 + i)))
        for t in range(1, 4):
            for i in range(4):
                e("v_fmac_f32 %s, %s, %s" % (v(72 + i), v(66 + t), v(32 + 4 * t + i)))
        self.swap_red("v_add_f32", ["v70"], ["v71"], 16)
        self.swap_red("v_add_f32", ["v70"], ["v71"], 32)
        self.red_scatter(72, "v76")
        self.dpp_red("v_add_f32", ["v70", "v76"], ["x8"])
        e("v_rcp_f32 v70, v70")
        e("v_mul_f32 v76, v76, v70")
        e("v_cvt_pk_bf16_f32 v76, v76, v76")
        self.perm_off8("v10", V_L, "v11")
        e("v_lshrrev_b32 v11, 4, %s" % V_L)
        e("v_lshl_add_u32 v29, v11, 1, v10")
        e("s_lshl_b32 %s, %s, 6" % (S_T1, S_W))
        e("v_add_u32 v10, %s, v29" % S_T1)
        e("ds_write_b16 v10, v76 offset:%d" % L_OV)
        e("s_waitcnt lgkmcnt(0)")
        self.barrier()
        self.x_frags(32, V_G16, 8, L_OV)
        e("s_lshl_b32 %s, %s, 13" % (S_SO, S_X))
        e("s_lshl_b32 %s, %s, 9" % (S_T1, S_A))
        e("s_add_u32 %s, %s, %s" % (S_SO, S_SO, S_T1))
        e("s_lshl_b32 %s, %s, 6" % (S_T1, S_W))
        e("s_add_u32 %s, %s, %s" % (S_SO, S_SO, S_T1))
        e("s_add_u32 %s, %s, 0x%x" % (S_SO, S_SO, WS_Y))
        e("s_waitcnt lgkmcnt(0)")
        self.mfma_chain(64, 128, 32, 8)
        self.tagins(68, 64)
        self.publish(68, V_G16, True, 0x0001000100010001)
        self.stamp(13)
        e("s_cmp_eq_u32 %s, 0" % S_A)
        e("s_cbranch_scc0 L_A_nored2")
        e("s_cmp_eq_u32 %s, 0" % S_W)
        e("s_cbranch_scc0 L_A_red2bar")
        e("s_lshl_b32 %s, %s, 13" % (S_SO, S_X))
        e("s_add_u32 %s, %s, 0x%x" % (S_SO, S_SO, WS_Y))
        self.sum16(32, True, 64, stamp_cnt=42)
        self.stamp(14)
        self.rb4(64, "v11", "v12")
        for i in range(4):
            e("v_mul_f32 %s, %s, %s" % (v(64 + i), v(64 + i), v(160 + i)))
        self.rb4(64, "v11", "v12")
        self.unpack2("v172", "v168", "v169")
        self.unpack2("v173", "v170", "v171")
        for i in range(4):
            e("v_add_f32 %s, %s, %s" % (v(168 + i), v(168 + i), v(64 + i)))
        self.rb4(168, "v11", "v12")
        e("v_readfirstlane_b32 %s, v168" % S_T1)
        for i in range(4):
            e("v_subrev_f32 %s, %s, %s" % (v(64 + i), S_T1, v(168 + i)))
        e("v_add_f32 v69, v64, v65")
        e("v_mul_f32 v70, v64, v64")
        e("v_add_f32 v69, v69, v66")
        e("v_fmac_f32 v70, v65, v65")
        e("v_add_f32 v69, v69, v67")
        e("v_fmac_f32 v70, v66, v66")
        e("v_fmac_f32 v70, v67, v67")
        self.dpp_red("v_add_f32", ["v69", "v70"], [1, 2, 4, 8])
        self.swap_red("v_add_f32", ["v69", "v70"], ["v72", "v73"], 16)
        e("v_mov_b32 v68, %s" % S_T1)
        e("v_mov_b32 v71, 0")
        self.tagins(72, 168)
        self.setexec(1 << 32)
        self.tagins(72, 68)
        e("s_mul_i32 %s, %s, 640" % (S_SO, S_X))
        e("s_add_u32 %s, %s, 0x%x" % (S_SO, S_SO, WS_XR))
        self.publish(72, V_L16, False, 0x1ffffffff)
        self.stamp(15)
        e.label("L_A_red2bar")
        self.barrier()
        e.label("L_A_nored2")
        e("s_mul_i32 %s, %s, 448" % (S_T1, S_X))
        e("s_lshr_b32 %s, %s, 3" % (S_T2, S_A))
        e("s_mul_i32 %s, %s, 224" % (S_T2, S_T2))
        e("s_add_u32 %s, %s, %s" % (S_T1, S_T1, S_T2))
        e("s_lshl_b32 %s, %s, 11" % (S_T1, S_T1))
        e("s_and_b32 %s, %s, 7" % (S_T2, S_A))
        e("s_lshl_b32 %s, %s, 8" % (S_T2, S_T2))
        e("s_add_u32 %s, %s, %s" % (S_T1, S_T1, S_T2))
        e("s_mul_i32 %s, %s, 7" % (S_T3, S_W))
        for i in range(7):
            e("s_add_u32 %s, %s, %d" % (S_T4, S_T3, i))
            e("s_lshr_b32 %s, %s, 1" % (S_T5, S_T4))
            e("s_and_b32 %s, %s, 1" % (S_T4, S_T4))
            e("s_lshl_b32 %s, %s, 14" % (S_T2, S_T5))
            e("s_add_u32 %s, %s, %s" % (S_T2, S_T2, S_T1))
            e("s_lshl_b32 %s, %s, 7" % (S_T0, S_T4))
            e("s_add_u32 %s, %s, %s" % (S_T2, S_T2, S_T0))
            e("s_mul_i32 %s, %s, 28" % (S_T4, S_T4))
            e("s_add_u32 %s, %s, %s" % (S_T4, S_T4, S_T5))
            e("s_lshl_b32 %s, %s, 10" % (S_T4, S_T4))
            self.dma("v15", R_B, S_T2, "s_add_u32 m0, %s, %d" % (S_T4, L_W5))
        e("s_cmp_eq_u32 %s, 7" % S_W)
        e("s_cbranch_scc1 L_A_noact")
        e("s_mul_i32 %s, %s, 28" % (S_SO, S_X))
        e("s_lshr_b32 %s, %s, 3" % (S_T1, S_A))
        e("s_mul_i32 %s, %s, 7" % (S_T1, S_T1))
        e("s_add_u32 %s, %s, %s" % (S_SO, S_SO, S_T1))
        e("s_add_u32 %s, %s, %s" % (S_SO, S_SO, S_W))
        e("s_lshl_b32 %s, %s, 11" % (S_SO, S_SO))
        e("s_add_u32 %s, %s, 0x%x" % (S_SO, S_SO, WS_GU))
        e("v_and_b32 v10, 7, %s" % V_L)
        e("v_lshlrev_b32 v10, 4, v10")
        e("v_lshl_add_u32 v10, %s, 5, v10" % V_G16)
        e("v_and_b32 v11, 1, %s" % V_RHO)
        e("v_mul_u32_u24 v11, %d, v11" % (14 * 2048))
        e("v_add_u32 v10, v10, v11")
        loads = ["buffer_load_dwordx4 %s, v10, %s, %s offen offset:%d sc1" % (vr(32 + 4 * t, 4), sr(R_WS), S_SO, 128 * t) for t in range(4)]
        self.poll(loads, [32 + 4 * t for t in range(4)], True, sleep=2, stamp_cnt=43)
        self.stamp(16)
        self.tree_sum(32, 4, 48)
        self.red_scatter(48, "v52")
        self.rb1("v52")
        e("v_mov_b32_dpp v53, v52 row_ror:8 row_mask:0xf bank_mask:0xf")
        self.silu("v52", "v54")
        self.rb1("v52")
        e("v_mul_f32 v52, v52, v53")
        e("v_cvt_pk_bf16_f32 v52, v52, v52")
        e("s_lshl_b32 %s, %s, 6" % (S_T1, S_W))
        e("v_add_u32 v10, %s, v29" % S_T1)
        self.setexec(0x00ff00ff00ff00ff)
        e("ds_write_b16 v10, v52 offset:%d" % L_ACT)
        e("s_mov_b64 exec, -1")
        e.label("L_A_noact")
        e("s_waitcnt vmcnt(0) lgkmcnt(0)")
        self.stamp(17)
        self.barrier()
        e("s_lshr_b32 %s, %s, 2" % (S_T1, S_W))
        e("s_mul_i32 %s, %s, %d" % (S_T1, S_T1, 28 * 1024))
        e("s_add_u32 %s, %s, %d" % (S_T1, S_T1, L_W5))
        e("v_add_u32 v10, %s, v30" % S_T1)
        self.tr_frags(128, "v10", 7)
        self.x_frags(32, V_G16, 7, L_ACT)
        e("s_and_b32 %s, %s, 7" % (S_SO, S_A))
        e("s_lshl_b32 %s, %s, 13" % (S_SO, S_SO))
        e("s_lshl_b32 %s, %s, 10" % (S_T1, S_X))
        e("s_add_u32 %s, %s, %s" % (S_SO, S_SO, S_T1))
        e("s_lshr_b32 %s, %s, 3" % (S_T1, S_A))
        e("s_lshl_b32 %s, %s, 9" % (S_T1, S_T1))
        e("s_add_u32 %s, %s, %s" % (S_SO, S_SO, S_T1))
        e("s_lshl_b32 %s, %s, 6" % (S_T1, S_W))
        e("s_add_u32 %s, %s, %s" % (S_SO, S_SO, S_T1))
        e("s_add_u32 %s, %s, 0x%x" % (S_SO, S_SO, WS_D))
        e("s_waitcnt lgkmcnt(0)")
        self.mfma_chain(64, 128, 32, 7)
        self.tagins(68, 64)
        self.publish(68, V_G16, False, 0x0001000100010001)
        self.stamp(18)
        e("s_cmp_eq_u32 %s, 0" % S_A)
        e("s_cbranch_scc0 L_fin")
        e("s_cmp_eq_u32 %s, 0" % S_W)
        e("s_cbranch_scc0 L_fin")
        e("s_lshl_b32 %s, %s, 13" % (S_SO, S_X))
        e("s_add_u32 %s, %s, 0x%x" % (S_SO, S_SO, WS_D))
        self.sum16(32, False, 64, stamp_cnt=44)
        self.stamp(19)
        self.rb4(64, "v11", "v12")
        for i in range(4):
            e("v_mul_f32 %s, %s, %s" % (v(64 + i), v(64 + i), v(164 + i)))
        self.rb4(64, "v11", "v12")
        for i in range(4):
            e("v_add_f32 %s, %s, %s" % (v(64 + i), v(64 + i), v(168 + i)))
        e("v_cvt_pk_bf16_f32 v64, v64, v65")
        e("v_cvt_pk_bf16_f32 v65, v66, v67")
        e("v_lshlrev_b32 v11, 3, %s" % V_L)
        e("s_lshl_b32 %s, %s, 8" % (S_T0, S_X))
        self.setexec(0xffffffff)
        e("buffer_store_dwordx2 v[64:65], v11, %s, %s offen" % (sr(R_OUT), S_T0))
        e("s_mov_b64 exec, -1")
        self.stamp(20)
        e("s_cmp_eq_u32 s2, 0")
        e("s_cbranch_scc0 L_fin")
        e("v_mov_b32 v11, 0")
        e("v_mov_b32 v12, %s" % S_T[0])
        self.setexec(1)
        e("buffer_store_dword v12, v11, %s, 0 offen sc1" % sr(R_WS))
        e("s_mov_b64 exec, -1")
        e("s_branch L_fin")

    def classB(self):
        e, c = self.e, self.c
        nt = " nt" if c.nt else ""
        self.srd(R_A, P_K, 4 * 65536 * 128 * 2)
        self.srd(R_B, P_V, 4 * 65536 * 128 * 2)
        e("s_lshr_b32 %s, %s, 1" % (S_T1, S_X))
        e("s_lshl_b32 %s, %s, 24" % (S_T1, S_T1))
        e("s_and_b32 %s, %s, 1" % (S_T5, S_X))
        e("s_lshl_b32 %s, %s, 4" % (S_T5, S_T5))
        e("s_add_u32 %s, %s, %s" % (S_T5, S_T5, S_A))
        e("s_lshl_b32 %s, %s, 15" % (S_T2, S_T5))
        e("s_add_u32 %s, %s, %s" % (S_T1, S_T1, S_T2))
        e("s_add_u32 %s, %s, %d" % (S_T1, S_T1, 61440 * 256))
        e("s_lshl_b32 %s, %s, 12" % (S_T2, S_W))
        e("s_add_u32 %s, %s, %s" % (S_T1, S_T1, S_T2))
        e("v_and_b32 v10, 15, %s" % V_L)
        e("v_lshl_add_u32 v10, v10, 8, %s" % V_G16)
        for i in range(4):
            e("buffer_load_dwordx4 %s, v10, %s, %s offen offset:%d%s" % (vr(128 + 4 * i, 4), sr(R_A), S_T1, 64 * i, nt))
        e("v_lshl_add_u32 v11, %s, 8, %s" % (V_RHO, V_DMA))
        e("s_lshl_b32 %s, %s, 11" % (S_T3, S_W))
        for i in range(2):
            for cb in range(2):
                e("s_add_u32 %s, %s, %d" % (S_T2, S_T1, i * 8 * 256 + cb * 128))
                self.dma("v11", R_B, S_T2, "s_add_u32 m0, %s, %d" % (S_T3, L_V + cb * 16384 + i * 1024))
        e("s_lshr_b32 %s, %s, 1" % (S_SO, S_X))
        e("s_lshl_b32 %s, %s, 3" % (S_SO, S_SO))
        e("s_add_u32 %s, %s, %s" % (S_SO, S_SO, S_W))
        e("s_lshl_b32 %s, %s, 12" % (S_SO, S_SO))
        e("s_add_u32 %s, %s, 0x%x" % (S_SO, S_SO, WS_Q))
        e("v_lshrrev_b32 v10, 5, %s" % V_L)
        e("v_lshlrev_b32 v12, 11, v10")
        e("v_and_b32 v11, 31, %s" % V_L)
        e("v_lshl_add_u32 v12, v11, 4, v12")
        loads = ["buffer_load_dwordx4 %s, v12, %s, %s offen offset:%d sc1" % (vr(32 + 4 * t, 4), sr(R_WS), S_SO, 512 * t) for t in range(4)]
        self.poll(loads, [32 + 4 * t for t in range(4)], False, sleep=2, stamp_cnt=41)
        self.stamp(8)
        self.tree_sum(32, 4, 48)
        e("v_permlane32_swap_b32 v48, v50")
        e("v_permlane32_swap_b32 v49, v51")
        e("v_add_f32 v48, v48, v50")
        e("v_add_f32 v49, v49, v51")
        e("v_cvt_pk_bf16_f32 v48, v48, v49")
        e("v_lshlrev_b32 v11, 3, v11")
        e("v_lshl_add_u32 v11, v10, 2, v11")
        e("s_mul_i32 %s, %s, %d" % (S_T1, S_W, QSTR))
        e("v_add_u32 v11, %s, v11" % S_T1)
        e("ds_write_b32 v11, v48 offset:%d" % L_QL)
        e("s_waitcnt lgkmcnt(0)")
        self.barrier()
        self.stamp(9)
        e("v_and_b32 v10, 7, %s" % V_L)
        e("v_mul_u32_u24 v28, %d, v10" % QSTR)
        e("v_add_u32 v28, v28, %s" % V_G16)
        for i in range(4):
            e("ds_read_b128 %s, v28 offset:%d" % (vr(32 + 4 * i, 4), L_QL + 64 * i))
        e("s_lshr_b32 %s, %s, 2" % (S_T1, S_W))
        e("s_lshl_b32 %s, %s, 14" % (S_T1, S_T1))
        e("s_add_u32 %s, %s, %d" % (S_T1, S_T1, L_V))
        e("v_add_u32 v11, %s, v30" % S_T1)
        self.tr_frags(144, "v11", 4)
        e("s_waitcnt lgkmcnt(8)")
        self.mfma_chain(64, 128, 32, 4)
        self.rb4(64, "v68", "v69")
        for i in range(4):
            e("v_mul_f32 %s, 0x%x, %s" % (v(64 + i), f2u(128 ** -0.5), v(64 + i)))
        self.rb4(64, "v68", "v69")
        e("v_max3_f32 v68, v64, v65, v66")
        e("v_max_f32 v68, v68, v67")
        self.swap_red("v_max_f32", ["v68"], ["v69"], 16)
        self.swap_red("v_max_f32", ["v68"], ["v69"], 32)
        e("v_lshlrev_b32 v27, 5, v10")
        e("s_lshl_b32 %s, %s, 2" % (S_T1, S_W))
        e("v_add_u32 v26, %s, v27" % S_T1)
        self.setexec(0xff)
        e("ds_write_b32 v26, v68 offset:%d" % L_MX)
        e("s_mov_b64 exec, -1")
        e("s_waitcnt lgkmcnt(0)")
        self.barrier()
        e("ds_read_b128 v[32:35], v27 offset:%d" % L_MX)
        e("ds_read_b128 v[36:39], v27 offset:%d" % (L_MX + 16))
        e("s_waitcnt lgkmcnt(0)")
        e("v_max3_f32 v68, v32, v33, v34")
        e("v_max3_f32 v69, v35, v36, v37")
        e("v_max3_f32 v68, v68, v38, v39")
        e("v_max_f32 v72, v68, v69")
        for i in range(4):
            e("v_sub_f32 %s, %s, v72" % (v(64 + i), v(64 + i)))
        for i in range(4):
            e("v_mul_f32 %s, %s, %s" % (v(64 + i), S_LOG2E, v(64 + i)))
        for i in range(4):
            e("v_exp_f32 %s, %s" % (v(64 + i), v(64 + i)))
        e("v_cvt_pk_bf16_f32 v70, v64, v65")
        e("v_cvt_pk_bf16_f32 v71, v66, v67")
        e("v_add_f32 v68, v64, v65")
        e("v_add_f32 v69, v66, v67")
        e("v_add_f32 v68, v68, v69")
        e("s_lshr_b32 %s, %s, 1" % (S_T1, S_W))
        e("s_lshl_b32 %s, %s, 6" % (S_T1, S_T1))
        e("s_and_b32 %s, %s, 1" % (S_T2, S_W))
        e("s_lshl_b32 %s, %s, 3" % (S_T2, S_T2))
        e("s_add_u32 %s, %s, %s" % (S_T1, S_T1, S_T2))
        e("v_add_u32 v11, %s, v28" % S_T1)
        self.setexec(0x00ff00ff00ff00ff)
        e("ds_write_b64 v11, v[70:71] offset:%d" % L_PL)
        e("s_mov_b64 exec, -1")
        self.swap_red("v_add_f32", ["v68"], ["v69"], 16)
        self.swap_red("v_add_f32", ["v68"], ["v69"], 32)
        self.setexec(0xff)
        e("ds_write_b32 v26, v68 offset:%d" % L_LS)
        e("s_mov_b64 exec, -1")
        e("s_waitcnt lgkmcnt(0)")
        self.barrier()
        for i in range(4):
            e("ds_read_b128 %s, v28 offset:%d" % (vr(32 + 4 * i, 4), L_PL + 64 * i))
        e("ds_read_b128 v[48:51], v27 offset:%d" % L_LS)
        e("ds_read_b128 v[52:55], v27 offset:%d" % (L_LS + 16))
        e("s_lshr_b32 %s, %s, 1" % (S_SO, S_X))
        e("s_lshl_b32 %s, %s, 17" % (S_SO, S_SO))
        e("s_lshl_b32 %s, %s, 9" % (S_T1, S_T5))
        e("s_add_u32 %s, %s, %s" % (S_SO, S_SO, S_T1))
        e("s_lshl_b32 %s, %s, 6" % (S_T1, S_W))
        e("s_add_u32 %s, %s, %s" % (S_SO, S_SO, S_T1))
        e("s_add_u32 %s, %s, 0x%x" % (S_SO, S_SO, WS_O))
        e("v_lshl_add_u32 v12, v10, 14, %s" % V_G16)
        e("s_waitcnt lgkmcnt(2)")
        self.mfma_chain(64, 144, 32, 4)
        self.tagins(68, 64)
        self.publish(68, "v12", False, 0x00ff00ff00ff00ff)
        e("s_cmp_eq_u32 %s, 0" % S_W)
        e("s_cbranch_scc0 L_B_nostat")
        e("s_waitcnt lgkmcnt(0)")
        e("v_pk_add_f32 v[48:49], v[48:49], v[50:51]")
        e("v_pk_add_f32 v[52:53], v[52:53], v[54:55]")
        e("v_pk_add_f32 v[48:49], v[48:49], v[52:53]")
        e("v_add_f32 v73, v48, v49")
        e("v_mov_b32 v74, 0")
        e("v_mov_b32 v75, 0")
        self.tagins(76, 72)
        e("s_lshr_b32 %s, %s, 1" % (S_SO, S_X))
        e("s_lshl_b32 %s, %s, 12" % (S_SO, S_SO))
        e("s_lshl_b32 %s, %s, 7" % (S_T1, S_T5))
        e("s_add_u32 %s, %s, %s" % (S_SO, S_SO, S_T1))
        e("s_add_u32 %s, %s, 0x%x" % (S_SO, S_SO, WS_S))
        self.publish(76, V_L16, False, 0xff)
        e.label("L_B_nostat")
        self.stamp(10)
        e("s_cmp_eq_u32 %s, 7" % S_W)
        e("s_cbranch_scc1 L_B_w7")
        for j, R in enumerate((R_C, R_D)):
            e("s_lshl_b32 %s, %s, 1" % (S_T1, S_W))
            e("s_add_u32 %s, %s, %d" % (S_T1, S_T1, j))
            e("s_cmp_ge_u32 %s, 7" % S_T1)
            e("s_cselect_b32 s%d, s%d, s%d" % (R, P_WU, P_WG))
            e("s_cselect_b32 s%d, s%d, s%d" % (R + 1, P_WU + 1, P_WG + 1))
            e("s_cselect_b32 %s, 7, 0" % S_T2)
            e("s_mov_b32 s%d, 0x%x" % (R + 2, 1024 * 3584 * 2))
            e("s_mov_b32 s%d, 0x00020000" % (R + 3))
            e("s_sub_u32 %s, %s, %s" % (S_T1, S_T1, S_T2))
            e("s_lshl_b32 %s, %s, 7" % (S_T1, S_T1))
            e("s_mul_i32 %s, %s, %d" % (S_T2, S_A, 64 * 7168))
            e("s_add_u32 %s, %s, %s" % (S_T1, S_T1, S_T2))
            e("s_mul_i32 %s, %s, 896" % (S_T2, S_X))
            e("s_add_u32 %s, %s, %s" % ((S_T3, S_T4)[j], S_T1, S_T2))
        e("s_movk_i32 %s, 7168" % S_T0)
        e("v_mul_lo_u32 v11, %s, %s" % (V_RHO, S_T0))
        e("v_add_u32 v11, v11, %s" % V_DMA)
        e("s_lshl_b32 %s, %s, 14" % (S_T1, S_W))
        for rbk in range(8):
            for j, R in enumerate((R_C, R_D)):
                e("s_add_u32 %s, %s, %d" % (S_T2, (S_T3, S_T4)[j], rbk * 8 * 7168))
                self.dma("v11", R, S_T2, "s_add_u32 m0, %s, %d" % (S_T1, L_W4 + j * 8192 + rbk * 1024))
        e("s_add_u32 %s, %s, %d" % (S_T1, S_T1, L_W4))
        for u in range(4):
            e("v_xor_b32 %s, %d, %s" % (v(20 + u), u << 5, V_TR))
            e("v_add_u32 %s, %s, %s" % (v(20 + u), S_T1, v(20 + u)))
        for s in range(2):
            e("s_waitcnt vmcnt(%d)" % (8 if s == 0 else 0))
            for i in range(8):
                self.tr_frags(128 + 8 * i + 4 * s, v(20 + (i & 3)), 1, extra_off=(i >> 2) * 8192, s0=s)
        self.stamp(11)
        e("s_waitcnt lgkmcnt(0)")
        e("s_branch L_B_b7")
        e.label("L_B_w7")
        e("v_and_b32 v10, 7, %s" % V_L)
        e("v_mul_u32_u24 v10, 640, v10")
        e("v_and_b32 v11, 15, %s" % V_L)
        e("v_lshlrev_b32 v11, 4, v11")
        e("s_mov_b32 %s, 0x%x" % (S_SO, WS_XR))
        e("s_lshr_b32 %s, %s, 1" % (S_T1, S_A))
        e("s_and_b32 %s, %s, 1" % (S_T2, S_A))
        e("s_lshl_b32 %s, %s, 8" % (S_T2, S_T2))
        e("s_mul_i32 %s, %s, 640" % (S_T3, S_T1))
        e("s_add_u32 %s, %s, %s" % (S_T3, S_T3, S_T2))
        e("s_add_u32 %s, %s, 0x%x" % (S_T3, S_T3, WS_XR))
        e("s_lshl_b32 %s, %s, 10" % (S_T4, S_T1))
        e("s_add_u32 %s, %s, %s" % (S_T4, S_T4, S_T2))
        e("s_add_u32 %s, %s, 0x%x" % (S_T4, S_T4, WS_MF))
        loads = ["buffer_load_dwordx4 v[32:35], v10, %s, %s offen offset:512 sc1" % (sr(R_WS), S_SO),
                 "buffer_load_dwordx4 v[36:39], v11, %s, %s offen sc1" % (sr(R_WS), S_T3),
                 "buffer_load_dwordx4 v[40:43], v11, %s, %s offen sc1" % (sr(R_WS), S_T4),
                 "buffer_load_dwordx4 v[44:47], v11, %s, %s offen offset:512 sc1" % (sr(R_WS), S_T4)]
        self.poll(loads, [32, 36, 40, 44], False, sleep=2, stamp_cnt=42)
        self.stamp(11)
        e("v_and_b32 v32, %s, v32" % S_HI16)
        for i in range(12):
            e("v_and_b32 %s, %s, %s" % (v(36 + i), S_HI16, v(36 + i)))
        e("v_mul_f32 v48, 0x%x, v33" % f2u(1.0 / 128))
        e("v_add_f32 v49, v32, v48")
        e("v_fma_f32 v50, -v48, v33, v34")
        e("v_mov_b32 v51, v49")
        self.dpp_red("v_add_f32", ["v51"], [1, 2, 4])
        e("v_mul_f32 v51, 0.125, v51" if False else "v_mul_f32 v51, 0x%x, v51" % f2u(0.125))
        e("v_sub_f32 v52, v49, v51")
        e("v_mul_f32 v52, v52, v52")
        e("v_mov_b32 v53, 0x%x" % f2u(128.0))
        e("v_fmac_f32 v50, v53, v52")
        self.dpp_red("v_add_f32", ["v50"], [1, 2, 4])
        e("v_mul_f32 v50, 0x%x, v50" % f2u(1.0 / 1024))
        e("v_max_f32 v50, 0, v50")
        self.rb1("v51")
        self.ln_den("v50", "v52")
        self.ln_apply(36, 44, 40, "v51", "v52", "v54", "v55")
        e("v_cvt_pk_bf16_f32 v54, v36, v37")
        e("v_cvt_pk_bf16_f32 v55, v38, v39")
        self.perm_off8("v10", V_L, "v11")
        e("v_and_b32 v11, 1, %s" % V_RHO)
        e("v_lshl_add_u32 v10, v11, 6, v10")
        self.setexec(0xffff)
        e("ds_write_b64 v10, v[54:55] offset:%d" % L_H2V)
        e("s_mov_b64 exec, -1")
        e("s_waitcnt lgkmcnt(0)")
        e.label("L_B_b7")
        self.stamp(12)
        self.barrier()
        e("s_cmp_eq_u32 %s, 7" % S_W)
        e("s_cbranch_scc1 L_fin")
        self.x_frags(32, V_G16, 2, L_H2V)
        e("s_mul_i32 %s, %s, 28" % (S_SO, S_X))
        e("s_lshl_b32 %s, %s, 2" % (S_T1, S_W))
        e("s_add_u32 %s, %s, %s" % (S_SO, S_SO, S_T1))
        e("s_lshl_b32 %s, %s, 4" % (S_SO, S_SO))
        e("s_add_u32 %s, %s, %s" % (S_SO, S_SO, S_A))
        e("s_lshl_b32 %s, %s, 7" % (S_SO, S_SO))
        e("s_add_u32 %s, %s, 0x%x" % (S_SO, S_SO, WS_GU))
        e("v_bfe_u32 v12, %s, 1, 2" % V_L)
        e("v_lshlrev_b32 v12, 11, v12")
        e("v_and_b32 v13, 1, %s" % V_L)
        e("v_lshl_add_u32 v12, v13, 6, v12")
        e("v_add_u32 v12, v12, %s" % V_G16)
        e("s_waitcnt lgkmcnt(0)")
        for i in range(8):
            self.mfma_chain(64 + 4 * i, 128 + 8 * i, 32, 2)
        for i in range(8):
            self.setexec(0x0001000100010001 << i)
            self.tagins(96, 64 + 4 * i)
        self.publish(96, "v12", True, 0x00ff00ff00ff00ff)
        self.stamp(13)


def main():
    cfg = Cfg()
    out = "cdna_kernels/%s.s" % NAME
    for a in sys.argv[1:]:
        if "=" in a:
            k, val = a.split("=", 1)
            if k == "out":
                out = val
            else:
                cur = getattr(cfg, k)
                setattr(cfg, k, type(cur)(int(val)) if isinstance(cur, (bool, int)) else type(cur)(val))
    text = Gen(cfg).build()
    open(out, "w").write(text)
    print("wrote", out, len(text.splitlines()), "lines")


if __name__ == "__main__":
    main()
```
